```python
import torch

def _softmax(x, axis=-1):
    return torch.softmax(x, dim=axis)
def _gelu(x):
    return torch.nn.functional.gelu(x, approximate="tanh")
def _silu(x):
    return torch.nn.functional.silu(x)
def _sigmoid(x):
    return torch.sigmoid(x)
def _layernorm(x, axis=-1, eps=1e-5):
    m = x.mean(dim=axis, keepdim=True)
    v = x.var(dim=axis, keepdim=True, unbiased=False)
    return (x - m) / torch.sqrt(v + eps)
def _scatter_add(tgt, idx, src, axis=0):
    return tgt.clone().index_add_(axis, idx, src)
def _segment_sum(src, seg, n):
    out = torch.zeros((n,) + src.shape[1:], dtype=src.dtype)
    return out.index_add_(0, seg, src)
def _pad(x, pw):
    flat = tuple(v for pair in reversed(pw) for v in pair)
    return torch.nn.functional.pad(x, flat)

kernel_name = 'parallel_sum__grouped_kv_mqa__glu_gated_bilinear__prompt'

def setup_inputs():

    _w = (lambda a: (lambda t: t.to(torch.bfloat16) if t.is_floating_point() else t)(torch.as_tensor(a)))
    def _A_setup():
        B, S, D, H = 1, 2048, 448, 16
        Dh = D // H
        return {
            "x": _w((lambda *s: torch.randn(*s, dtype=torch.bfloat16) * 0.05)(B, S, D)),
            "wq": _w((lambda *s: torch.randn(*s, dtype=torch.bfloat16) * 0.05)(D, H * Dh)),
            "wk": _w((lambda *s: torch.randn(*s, dtype=torch.bfloat16) * 0.05)(D, Dh)),
            "wv": _w((lambda *s: torch.randn(*s, dtype=torch.bfloat16) * 0.05)(D, Dh)),
            "wo": _w((lambda *s: torch.randn(*s, dtype=torch.bfloat16) * 0.05)(H * Dh, D)),
        }
    _A_in = _A_setup()

    def _B_setup():
        B, S, D, F = 1, 2048, 448, 1792
        return {
            "x": _w((lambda *s: torch.randn(*s, dtype=torch.bfloat16) * 0.05)(B, S, D)),
            "w_gate": _w((lambda *s: torch.randn(*s, dtype=torch.bfloat16) * 0.4)(D, F) * (D ** -0.5)),
            "w_up": _w((lambda *s: torch.randn(*s, dtype=torch.bfloat16) * 0.4)(D, F) * (D ** -0.5)),
            "w_down": _w((lambda *s: torch.randn(*s, dtype=torch.bfloat16) * 0.4)(F, D) * (F ** -0.5)),
        }
    _B_in = _B_setup()

    return {
        "A_x": _A_in["x"],
        "A_wq": _A_in["wq"],
        "A_wk": _A_in["wk"],
        "A_wv": _A_in["wv"],
        "A_wo": _A_in["wo"],
        "B_x": _B_in["x"],
        "B_w_gate": _B_in["w_gate"],
        "B_w_up": _B_in["w_up"],
        "B_w_down": _B_in["w_down"],
    }

def reference(A_x, A_wq, A_wk, A_wv, A_wo, B_x, B_w_gate, B_w_up, B_w_down):
    def _A_ref(x, wq, wk, wv, wo):
        B, S, D = x.shape
        H = 16
        Dh = D // H
        q = (lambda x, *d: x.permute(*d))((x @ wq).reshape(B, S, H, Dh), 0, 2, 1, 3)
        k = x @ wk
        v = x @ wv
        scores = torch.einsum("bhqd,bkd->bhqk", q, k) * (Dh ** -0.5)
        p = _softmax(scores, axis=-1)
        o = torch.einsum("bhqk,bkd->bhqd", p, v)
        return (lambda x, *d: x.permute(*d))(o, 0, 2, 1, 3).reshape(B, S, H * Dh) @ wo

    def _B_ref(x, w_gate, w_up, w_down):
        g = torch.einsum("bsd,df->bsf", x, w_gate)
        u = torch.einsum("bsd,df->bsf", x, w_up)
        h = g * u
        return torch.einsum("bsf,fd->bsd", h, w_down)

    x = A_x
    xn = _layernorm(x, axis=-1)
    return x + _A_ref(xn, A_wq, A_wk, A_wv, A_wo) + _B_ref(xn, B_w_gate, B_w_up, B_w_down)
```

```python
import re

TRANS = ("v_exp_f32", "v_log_f32", "v_rcp_f32", "v_rsq_f32", "v_sqrt_f32", "v_sin_f32", "v_cos_f32",
         "v_exp_f16", "v_log_f16", "v_rcp_f16", "v_rsq_f16", "v_sqrt_f16", "v_rcp_iflag_f32")

def vr(base, n=1):
    return f"v{base}" if n == 1 else f"v[{base}:{base+n-1}]"
def sr(base, n=1):
    return f"s{base}" if n == 1 else f"s[{base}:{base+n-1}]"
def ar(base, n=1):
    return f"a{base}" if n == 1 else f"a[{base}:{base+n-1}]"

_REG = re.compile(r"^(-|\|)?(abs\()?([vsa])(\d+)\)?\|?$")
_RNG = re.compile(r"^(-)?([vsa])\[(\d+):(\d+)\]$")

def regs_of(op):
    op = op.strip()
    m = _REG.match(op)
    if m:
        return [(m.group(3), int(m.group(4)))]
    m = _RNG.match(op)
    if m:
        return [(m.group(2), i) for i in range(int(m.group(3)), int(m.group(4)) + 1)]
    if op == "vcc":
        return [("s", "vcc")]
    if op in ("vcc_lo", "vcc_hi"):
        return [("s", "vcc")]
    if op == "exec" or op in ("exec_lo", "exec_hi"):
        return [("s", "exec")]
    if op == "m0":
        return [("s", "m0")]
    return []

class Ins:
    def __init__(self, text):
        self.text = text
        t = text.split(";")[0].strip()
        self.is_label = t.endswith(":")
        self.is_dir = t.startswith(".")
        self.op = ""
        self.dst = []; self.src = []
        self.kind = None
        if not t or self.is_label or self.is_dir:
            self.kind = "none"
            if self.is_label: self.label = t[:-1]
            return
        parts = t.split(None, 1)
        self.op = op = parts[0]
        rest = parts[1] if len(parts) > 1 else ""
        ops = []
        depth = 0; cur = ""
        for ch in rest:
            if ch == "[": depth += 1
            if ch == "]": depth -= 1
            if ch == "," and depth == 0:
                ops.append(cur.strip()); cur = ""
            else:
                cur += ch
        if cur.strip(): ops.append(cur.strip())
        mods = ""
        if ops:
            last = ops[-1]
            depth = 0
            for i, ch in enumerate(last):
                if ch == "[": depth += 1
                if ch == "]": depth -= 1
                if ch == " " and depth == 0:
                    mods = last[i:]; ops[-1] = last[:i]
                    break
        self.ops = ops; self.mods = mods
        R = [regs_of(o) for o in ops]
        self.passes = 0
        self.srcC = []; self.srcAB = []
        self.storedata = []
        if op.startswith("v_mfma"):
            self.kind = "mfma"
            self.dst = R[0]; self.srcAB = R[1] + R[2]; self.srcC = R[3]
            self.src = self.srcAB + self.srcC
            if "32x32x16" in op or "32x32x8" in op: self.passes = 8
            elif "16x16x32" in op or "16x16x16" in op: self.passes = 4
            elif "4x4x4" in op: self.passes = 2
            else: raise ValueError(op)
        elif op.startswith("v_"):
            self.kind = "valu"
            if op.startswith("v_cmp"):
                self.dst = R[0]; self.src = sum(R[1:], [])
                if op.startswith("v_cmpx"): self.dst += [("s", "exec")]
            elif op.startswith("v_readfirstlane") or op.startswith("v_readlane"):
                self.dst = R[0]; self.src = sum(R[1:], [])
            elif op.startswith("v_permlane") and "swap" in op:
                self.dst = R[0] + R[1]; self.src = R[0] + R[1]
            elif op.startswith("v_add_co") or op.startswith("v_sub_co") or op.startswith("v_addc_co") or op.startswith("v_subb_co") or op.startswith("v_mad_u64"):
                self.dst = R[0] + R[1]; self.src = sum(R[2:], [])
            elif op == "v_nop":
                pass
            else:
                self.dst = R[0]; self.src = sum(R[1:], [])
                if op.startswith("v_fmac") or op.startswith("v_dot2c") or op.startswith("v_writelane") or "dpp" in op or "quad_perm" in mods or "row_" in mods:
                    self.src += R[0]
                if op.startswith("v_cndmask") and len(ops) == 3:
                    self.src += [("s", "vcc")]
            self.trans = any(op.startswith(x) for x in TRANS)
            self.dot = op.startswith("v_dot")
            self.dpp = ("dpp" in op) or ("quad_perm" in mods) or ("row_" in mods)
        elif op.startswith("buffer_") or op.startswith("global_"):
            self.kind = "vmem"
            lds = " lds" in (" " + mods) or "_lds_" in op
            self.lds = lds
            if op.startswith("buffer_inv") or op.startswith("buffer_wbl2"):
                pass
            elif "store" in op or "atomic" in op:
                self.src = sum(R, [])
                d = R[0] if op.startswith("buffer_") else R[1]
                if "atomic" in op and "sc0" in mods:
                    if op.startswith("buffer_"):
                        self.dst = R[0]
                    else:
                        self.dst = R[0]; d = R[2]
                if len(d) >= 3: self.storedata = d
            elif lds:
                self.src = sum(R, []) + [("s", "m0")]
            else:
                self.dst = R[0]; self.src = sum(R[1:], [])
        elif op.startswith("ds_"):
            self.kind = "ds"
            if op.startswith("ds_write") or op.startswith("ds_add") or op.startswith("ds_max") or op.startswith("ds_or"):
                if "rtn" in op:
                    self.dst = R[0]; self.src = sum(R[1:], [])
                else:
                    self.src = sum(R, [])
            else:
                self.dst = R[0]; self.src = sum(R[1:], [])
        elif op.startswith("s_"):
            self.kind = "salu"
            if op.startswith("s_cmp") or op.startswith("s_cbranch") or op in ("s_branch", "s_waitcnt", "s_barrier", "s_nop", "s_endpgm", "s_setprio", "s_sleep", "s_bitcmp1_b32", "s_bitcmp0_b32"):
                self.src = sum(R, [])
            else:
                self.dst = R[0]; self.src = sum(R[1:], [])
                if "saveexec" in op: self.dst = self.dst + [("s", "exec")]
        else:
            raise ValueError("unknown instr: " + text)

    def states(self):
        if self.kind == "none": return 0
        if self.op == "s_nop": return int(self.ops[0], 0) + 1
        return 1

def need(p, c):
    n = 0
    pd = set(p.dst); cs = set(c.src); cd = set(c.dst)
    pv = {x for x in pd if x[0] in "va"}; ps = {x for x in pd if x[0] == "s"}
    if p.kind == "valu":
        if c.kind == "mfma" and pv & cs: n = max(n, 3 if p.dot else 2)
        if c.kind == "valu":
            if p.trans and not c.trans and pv & cs: n = max(n, 1)
            if (c.op.startswith("v_readlane") or c.op.startswith("v_readfirstlane")) and pv & cs: n = max(n, 1)
            if c.op.startswith("v_permlane") and pv & cs: n = max(n, 2)
            if c.dpp and pv & cs: n = max(n, 2)
            if ps & cs:
                n = max(n, 4 if (c.op.startswith("v_readlane") or c.op.startswith("v_writelane")) else 2)
            if p.dot:
                if c.op == p.op:
                    ab = set(regs_of(c.ops[1]) + regs_of(c.ops[2]))
                    if pv & ab: n = max(n, 3)
                elif pv & (cs | cd): n = max(n, 3)
            if ("s", "exec") in ps: n = max(n, 5)
        if c.kind == "mfma" and ("s", "exec") in ps: n = max(n, 4)
        if c.kind == "vmem" and ps & cs: n = max(n, 5)
        if c.kind in ("vmem", "ds") and p.dot and pv & cs: n = max(n, 3)
        if c.kind == "salu" and ps & cs: n = max(n, 1)
    if p.kind == "mfma":
        P = p.passes
        if c.kind == "mfma":
            if pv & set(c.srcAB): n = max(n, {2: 5, 4: 8, 8: 12}[P])
            if pv & set(c.srcC):
                if list(c.srcC) == list(p.dst) and c.passes == P:
                    n = max(n, 2 if P == 2 else 0)
                else:
                    n = max(n, {2: 4, 4: 6, 8: 10}[P])
            elif pv & cd:
                n = max(n, {2: 5, 4: 8, 8: 12}[P])
        elif c.kind in ("valu", "vmem", "ds"):
            if pv & (cs | cd): n = max(n, {2: 5, 4: 8, 8: 12}[P])
        if c.kind == "valu" and set(p.srcC) & cd: n = max(n, {2: 1, 4: 3, 8: 7}[P])
    if p.kind == "salu":
        if ("s", "m0") in ps and c.kind == "vmem" and getattr(c, "lds", False): n = max(n, 1)
        if ("s", "m0") in ps and c.kind == "ds" and "addtid" in c.op: n = max(n, 1)
    if p.kind == "vmem" and p.storedata:
        if set(p.storedata) & cd: n = max(n, 2 if c.kind in ("valu", "mfma") else 1)
    if p.kind == "ds" and p.op.startswith("ds_write_b128") or p.kind == "ds" and p.op.startswith("ds_write_b96"):
        pass
    return n

WINDOW = 16

def _required_pad(hist, c):
    dist = 0; pad = 0
    for p in reversed(hist):
        if p.kind == "none": continue
        r = need(p, c)
        if r > dist: pad = max(pad, r - dist)
        dist += p.states()
        if dist >= WINDOW: break
    return pad

def nops(n):
    out = []
    while n > 0:
        k = min(n, 16)
        out.append(Ins(f"    s_nop {k-1}"))
        n -= k
    return out

def fix_hazards(lines, verbose=False):
    ins = [Ins(l) for l in lines]
    total = 0
    changed = True
    rounds = 0
    while changed:
        changed = False; rounds += 1
        out = []
        labels = {x.label: i for i, x in enumerate(ins) if x.is_label}
        for i, c in enumerate(ins):
            if c.kind != "none":
                hist = out
                h = []
                for p in reversed(out):
                    if p.op in ("s_branch", "s_endpgm"): break
                    h.append(p)
                    if len(h) > 40: break
                h.reverse()
                pad = _required_pad(h, c)
                if c.op.startswith("s_cbranch") or c.op == "s_branch":
                    tgt = labels[c.ops[0]]
                    hh = h + nops(pad) + [c]
                    dist = 0; extra = 0
                    j = tgt
                    sim = list(hh)
                    while j < len(ins) and dist < WINDOW:
                        t = ins[j]
                        if t.kind != "none":
                            d = 0
                            for pi in range(len(sim) - 1, -1, -1):
                                p = sim[pi]
                                if p.kind == "none": continue
                                if pi < len(hh):
                                    r = need(p, t)
                                    if r > d: extra = max(extra, r - d)
                                d += p.states()
                                if d >= WINDOW: break
                            dist += t.states()
                            sim.append(t)
                            if t.op in ("s_branch", "s_endpgm"): break
                        j += 1
                    pad += extra
                if pad:
                    if verbose: print(f"pad {pad} before: {c.text.strip()}")
                    out += nops(pad); total += pad; changed = True
            out.append(c)
        ins = out
        if rounds > 10: raise RuntimeError("hazard fixer did not converge")
    return [x.text for x in ins], total

class Asm:
    def __init__(self):
        self.lines = []
    def __call__(self, text):
        for l in text.split("\n"):
            l = l.strip()
            if not l: continue
            if l.startswith(";"):
                self.lines.append("    " + l); continue
            if l.split(";")[0].strip().endswith(":") or l.startswith("."):
                self.lines.append(l)
            else:
                self.lines.append("    " + l)
    def c(self, text):
        self.lines.append("    ; " + text)

class Alloc:
    def __init__(self, start=0, limit=256):
        self.n = start; self.limit = limit; self.names = {}
    def __call__(self, name, cnt=1, align=1):
        if cnt >= 2: align = max(align, 2)
        self.n = (self.n + align - 1) // align * align
        b = self.n; self.n += cnt
        assert self.n <= self.limit, f"out of regs at {name}: {self.n}"
        self.names[name] = (b, cnt)
        return b

def kernel_text(name, asm, nv, ns=102, verbose=False):
    body, pads = fix_hazards(asm.lines, verbose)
    nvr = (nv + 7) // 8 * 8
    head = f""".text
.globl {name}
.p2align 8
.type {name},@function
{name}:
"""
    return head + "\n".join(body) + "\n", f""".amdhsa_kernel {name}
  .amdhsa_next_free_vgpr {nvr}
  .amdhsa_next_free_sgpr {ns}
  .amdhsa_accum_offset {min(256,(nvr + 3) // 4 * 4)}
  .amdhsa_group_segment_fixed_size 0
  .amdhsa_kernarg_size 96
  .amdhsa_user_sgpr_count 2
  .amdhsa_user_sgpr_kernarg_segment_ptr 1
  .amdhsa_system_sgpr_workgroup_id_x 1
.end_amdhsa_kernel
"""
```

```python
import struct, math
def f2h(x):
    return "0x%08x" % struct.unpack("<I", struct.pack("<f", x))[0]
QF = 0x000000
KV = 0x200000
KN = 0x240000
AF = 0x300000
AF_TB = 144 * 1024
WS_SIZE = 0x1000000
QSCALE = (28 ** -0.5) * math.log2(math.e)
BOUND2 = 60.0 * 60.0
```

```python
from asmlib import *
from common import *

def gen_k1():
    a = Asm()
    V = Alloc(1, 256)
    sX, sW0, sW1, sWS = 4, 8, 12, 16
    sRG, sCG, sWv, sTB, sCH = 20, 21, 22, 23, 24
    sT0, sT1, sT2, sT3 = 25, 26, 27, 28
    sM0B = 29
    sSTR = 30
    sMASK = 31
    sP = 32
    sTBG = 46
    sSO = 48
    sEX = 52
    vL = V("lane"); vT0 = V("t0"); vT1 = V("t1"); vT2 = V("t2"); vT3 = V("t3")
    vXe = V("xe"); vXo = V("xo"); vD = V("dma")
    vAe = V("ae", 4); vAo = V("ao", 4); vAkv = V("akv")
    vS1 = V("s1", 2); vS2 = vS1 + 1
    vS1b = V("s1b"); vS2b = V("s2b")
    vSel = V("sel", 4, 4)
    vCS = V("cs", 4, 4); vCSkv = V("cskv", 4, 4)
    vX = V("x", 64, 4)
    vF = V("f", 32, 4)
    vFkv = V("fkv", 4, 4)
    vAcc = V("acc", 64, 4)
    vAcckv = V("acckv", 16, 4)
    nv = V.n

    SCR = 131072
    SCR_CS = SCR + 4096

    a(f"""
    s_cmp_ge_u32 s2, 256
    s_cbranch_scc1 K1_end
    s_load_dwordx8 s[{sP}:{sP+7}], s[0:1], 0
    s_load_dwordx4 s[{sP+8}:{sP+11}], s[0:1], 48
    s_load_dwordx2 s[{sP+12}:{sP+13}], s[0:1], 88
    v_lshrrev_b32 v{vT0}, 6, v0
    v_and_b32 v{vL}, 63, v0
    v_readfirstlane_b32 s{sWv}, v{vT0}
    s_and_b32 s{sT0}, s2, 7
    s_lshr_b32 s{sT1}, s2, 3
    s_and_b32 s{sT2}, s{sT0}, 1
    s_lshl_b32 s{sT2}, s{sT2}, 3
    s_and_b32 s{sT3}, s{sT1}, 7
    s_add_u32 s{sRG}, s{sT2}, s{sT3}
    s_lshr_b32 s{sT2}, s{sT0}, 1
    s_lshl_b32 s{sT2}, s{sT2}, 2
    s_lshr_b32 s{sT3}, s{sT1}, 3
    s_add_u32 s{sCG}, s{sT2}, s{sT3}
    s_and_b32 s{sTB}, s{sWv}, 3
    s_lshr_b32 s{sCH}, s{sWv}, 2
    s_lshl_b32 s{sTBG}, s{sRG}, 2
    s_add_u32 s{sTBG}, s{sTBG}, s{sTB}
    s_mov_b32 s{sMASK}, 0xffff0000
    v_and_b32 v{vT0}, 31, v{vL}
    s_lshl_b32 s{sT0}, s{sTBG}, 5
    v_add_u32 v{vT0}, s{sT0}, v{vT0}
    v_mul_u32_u24 v{vT0}, 896, v{vT0}
    v_lshrrev_b32 v{vT1}, 5, v{vL}
    v_lshl_add_u32 v{vT0}, v{vT1}, 4, v{vT0}
    s_lshl_b32 s{sT0}, s{sCH}, 5
    s_sub_u32 s{sT1}, 32, s{sT0}
    v_add_u32 v{vXe}, s{sT0}, v{vT0}
    v_add_u32 v{vXo}, s{sT1}, v{vT0}
    v_lshrrev_b32 v{vT0}, 2, v{vL}
    v_lshrrev_b32 v{vT1}, 4, v{vL}
    v_xor_b32 v{vT0}, v{vT0}, v{vT1}
    v_and_b32 v{vT0}, 1, v{vT0}
    v_cmp_eq_u32 vcc, 0, v{vT0}
    v_mov_b32 v{vT1}, 0x3f803f80
    v_cndmask_b32 v{vSel}, 0, v{vT1}, vcc
    v_cndmask_b32 v{vSel+1}, 0, v{vT1}, vcc
    v_cndmask_b32 v{vSel+2}, 0, v{vT1}, vcc
    v_cndmask_b32 v{vSel+3}, 0, v{vT1}, vcc
    v_mov_b32 v{vS1}, 0
    v_mov_b32 v{vS2}, 0
    v_mov_b32 v{vS1b}, 0
    v_mov_b32 v{vS2b}, 0
    s_waitcnt lgkmcnt(0)
    s_mov_b32 s{sX}, s{sP}
    s_mov_b32 s{sX+1}, s{sP+1}
    s_mov_b32 s{sX+2}, {2048*896}
    s_mov_b32 s{sX+3}, 0x20000
    s_mov_b32 s{sWS}, s{sP+12}
    s_mov_b32 s{sWS+1}, s{sP+13}
    s_mov_b32 s{sWS+2}, {WS_SIZE}
    s_mov_b32 s{sWS+3}, 0x20000
    s_mov_b32 s{sW0+3}, 0x20000
    s_mov_b32 s{sW1+3}, 0x20000
    s_cmp_ge_u32 s{sCG}, 14
    s_cbranch_scc1 K1_qkv
    """)

    def xloads(c):
        for sl in range(4):
            s = 4 * c + sl
            r = vX + 4 * (s % 16)
            if s % 2 == 0:
                a(f"buffer_load_dwordx4 {vr(r,4)}, v{vXe}, s[{sX}:{sX+3}], 0 offen offset:{s*32}")
            else:
                a(f"buffer_load_dwordx4 {vr(r,4)}, v{vXo}, s[{sX}:{sX+3}], 0 offen offset:{(s-1)*32}")

    def dma_gu(c):
        slot = (c & 3) * 32768
        a(f"s_mov_b32 s{sSO}, {c*64*3584}")
        a(f"s_mov_b32 s{sSO+1}, {c*64*3584 + 4*3584}")
        for j in range(4):
            a(f"s_add_u32 m0, s{sM0B}, {slot + j*1024}")
            srd = sW0 if j % 2 == 0 else sW1
            a(f"buffer_load_dwordx4 v{vD}, s[{srd}:{srd+3}], s{sSO + j//2} offen lds")

    def dma_qkv(c):
        slot = (c & 3) * 32768
        for j in range(4):
            a(f"s_mul_i32 s{sSO+j}, s{sSTR}, {4*c+j}")
        for j in range(4):
            a(f"s_add_u32 m0, s{sM0B}, {slot + j*8192}")
            a(f"buffer_load_dwordx4 v{vD}, s[{sW0}:{sW0+3}], s{sSO + j} offen lds")

    def reads(s, qkv):
        c, sl = divmod(s, 4)
        off = (c & 1) * 32768 + (sl & ~1) * 8192
        second = 1792 if qkv else 2048
        base = vAe if sl % 2 == 0 else vAo
        n = 0
        for i in range(4):
            f = vF + 16 * (s & 1) + 4 * i
            a(f"ds_read_b64_tr_b16 {vr(f,2)}, v{base+i} offset:{off}")
            a(f"ds_read_b64_tr_b16 {vr(f+2,2)}, v{base+i} offset:{off+second}")
            n += 2
        if qkv and sl % 2 == 0:
            a(f"ds_read_b64_tr_b16 {vr(vFkv,2)}, v{vAkv} offset:{off}")
            a(f"ds_read_b64_tr_b16 {vr(vFkv+2,2)}, v{vAkv} offset:{off+224}")
            n += 2
        return n

    def stats_ops(s):
        se = s & ~1
        r0 = vX + 4 * (se % 16) + 2 * (s & 1)
        ops = []
        for k, r in enumerate((r0, r0 + 1)):
            t0, t1 = (vT0, vT1) if k == 0 else (vT2, vT3)
            ops += [f"v_lshlrev_b32 v{t0}, 16, v{r}", f"v_and_b32 v{t1}, s{sMASK}, v{r}",
                    f"v_add_f32 v{vS1}, v{vS1}, v{t0}", f"v_add_f32 v{vS1b}, v{vS1b}, v{t1}",
                    f"v_fmac_f32 v{vS2}, v{t0}, v{t0}", f"v_fmac_f32 v{vS2b}, v{t1}, v{t1}"]
        return ops

    def mainloop(qkv, tag):
        dma = dma_qkv if qkv else dma_gu
        for c in range(4):
            dma(c); xloads(c)
        vm = {0: 24, 1: 16, 2: 16, 3: 16, 4: 16, 5: 8, 6: 0}
        a(f"s_waitcnt vmcnt({vm[0]})\ns_barrier")
        reads(0, qkv)
        for s in range(28):
            c, sl = divmod(s, 4)
            nnext = 0
            if s + 1 < 28:
                if (s + 1) % 4 == 0:
                    cn = (s + 1) // 4
                    a(f"s_waitcnt vmcnt({vm[cn]}) lgkmcnt(0)\ns_barrier")
                    if cn % 2 == 0:
                        for r in list(range(vAe, vAe + 4)) + list(range(vAo, vAo + 4)) + ([vAkv] if qkv else []):
                            a(f"v_xor_b32 v{r}, 0x10000, v{r}")
                    nnext = reads(s + 1, qkv)
                    if cn + 3 <= 6: dma(cn + 3)
                else:
                    nnext = reads(s + 1, qkv)
            a(f"s_waitcnt lgkmcnt({nnext})")
            st = stats_ops(s)
            x = vr(vX + 4 * (s % 16), 4)
            for i in range(4):
                f = vr(vF + 16 * (s & 1) + 4 * i, 4)
                acc = vr(vAcc + 16 * i, 16)
                a(f"v_mfma_f32_32x32x16_bf16 {acc}, {f}, {x}, {acc if s else 0}")
                for o in st[3 * i: 3 * i + 3]: a(o)
            f0 = vr(vF + 16 * (s & 1), 4)
            a(f"v_mfma_f32_16x16x32_bf16 {vr(vCS,4)}, {vr(vSel,4)}, {f0}, {vr(vCS,4) if s else 0}")
            if qkv and sl % 2 == 0:
                a(f"v_mfma_f32_32x32x16_bf16 {vr(vAcckv,16)}, {vr(vFkv,4)}, {x}, {vr(vAcckv,16) if s else 0}")
                a(f"v_mfma_f32_16x16x32_bf16 {vr(vCSkv,4)}, {vr(vSel,4)}, {vr(vFkv,4)}, {vr(vCSkv,4) if s else 0}")
            if sl == 3 and c + 4 <= 6: xloads(c + 4)

    vM = vX; vR = vX + 1; vBe = vX + 4; vAx = vX + 8; vP = vX + 16; vQ = vX + 32

    def stats_exchange():
        a(f"""
        v_add_f32 v{vS1}, v{vS1}, v{vS1b}
        v_add_f32 v{vS2}, v{vS2}, v{vS2b}
        s_lshl_b32 s{sT0}, s{sWv}, 9
        s_add_u32 s{sT0}, s{sT0}, {SCR}
        v_lshl_add_u32 v{vT0}, v{vL}, 3, s{sT0}
        ds_write_b64 v{vT0}, {vr(vS1,2)}
        s_lshl_b32 s{sT0}, s{sWv}, 8
        s_add_u32 s{sT0}, s{sT0}, {SCR_CS}
        v_lshl_add_u32 v{vT1}, v{vL}, 2, s{sT0}
        ds_write_b32 v{vT1}, v{vCS}
        s_lshl_b32 s{sT0}, s{sTB}, 9
        s_add_u32 s{sT0}, s{sT0}, {SCR}
        v_and_b32 v{vT0}, 31, v{vL}
        v_lshl_add_u32 v{vT0}, v{vT0}, 3, s{sT0}
        s_waitcnt lgkmcnt(0)
        s_barrier
        ds_read2_b64 {vr(vP,4)}, v{vT0} offset0:0 offset1:32
        ds_read_b64 {vr(vP+4,2)}, v{vT0} offset:2048
        ds_read_b64 {vr(vP+6,2)}, v{vT0} offset:2304
        """)
        for i in range(1, 4):
            a(f"""
            s_add_u32 s{sT0}, s{sTB}, {i}
            s_and_b32 s{sT0}, s{sT0}, 3
            s_lshl_b32 s{sT1}, s{sCH}, 2
            s_add_u32 s{sT0}, s{sT0}, s{sT1}
            s_lshl_b32 s{sT0}, s{sT0}, 8
            s_add_u32 s{sT0}, s{sT0}, {SCR_CS}
            v_lshl_add_u32 v{vT1}, v{vL}, 2, s{sT0}
            ds_read_b32 v{vCS+i}, v{vT1}
            """)
        a(f"""
        s_waitcnt lgkmcnt(3)
        v_add_f32 v{vP}, v{vP}, v{vP+2}
        v_add_f32 v{vP+1}, v{vP+1}, v{vP+3}
        v_add_f32 v{vP+4}, v{vP+4}, v{vP+6}
        v_add_f32 v{vP+5}, v{vP+5}, v{vP+7}
        v_add_f32 v{vP}, v{vP}, v{vP+4}
        v_add_f32 v{vP+1}, v{vP+1}, v{vP+5}
        v_mul_f32 v{vM}, {f2h(-1.0/448)}, v{vP}
        v_mul_f32 v{vT0}, {f2h(1.0/448)}, v{vP+1}
        v_fma_f32 v{vT0}, -v{vM}, v{vM}, v{vT0}
        v_max_f32 v{vT0}, 0, v{vT0}
        v_add_f32 v{vT0}, {f2h(1e-5)}, v{vT0}
        v_rsq_f32 v{vR}, v{vT0}
        v_cvt_pk_bf16_f32 v{vT1}, v{vM}, v{vM}
        v_and_b32 v{vT1}, s{sMASK}, v{vT1}
        v_sub_f32 v{vT1}, v{vM}, v{vT1}
        v_cvt_pk_bf16_f32 v{vT1}, v{vM}, v{vT1}
        v_cmp_gt_u32 vcc, 32, v{vL}
        v_cndmask_b32 v{vBe}, 0, v{vT1}, vcc
        v_cndmask_b32 v{vBe+1}, 0, v{vT1}, vcc
        v_mov_b32 v{vBe+2}, 0
        v_mov_b32 v{vBe+3}, 0
        s_waitcnt lgkmcnt(0)
        """)

    def ext(cs, acc, tmp):
        a(f"""
        v_cvt_pk_bf16_f32 v{tmp}, v{cs}, v{cs}
        v_and_b32 v{vT0}, s{sMASK}, v{tmp}
        v_sub_f32 v{vT0}, v{cs}, v{vT0}
        v_cvt_pk_bf16_f32 v{tmp+1}, v{vT0}, v{vT0}
        v_mov_b32 v{tmp+2}, 0
        v_mov_b32 v{tmp+3}, 0
        v_mfma_f32_32x32x16_bf16 {vr(acc,16)}, {vr(tmp,4)}, {vr(vBe,4)}, {vr(acc,16)}
        """)

    a(f"""
    s_mov_b32 s{sW0}, s{sP+8}
    s_mov_b32 s{sW0+1}, s{sP+9}
    s_mov_b32 s{sW0+2}, {448*3584}
    s_mov_b32 s{sW1}, s{sP+10}
    s_mov_b32 s{sW1+1}, s{sP+11}
    s_mov_b32 s{sW1+2}, {448*3584}
    v_bfe_u32 v{vT0}, v{vL}, 2, 2
    s_lshl_b32 s{sT0}, s{sWv}, 3
    v_add_u32 v{vT0}, s{sT0}, v{vT0}
    v_mul_u32_u24 v{vT0}, 3584, v{vT0}
    v_lshrrev_b32 v{vT1}, 4, v{vL}
    v_lshl_add_u32 v{vT0}, v{vT1}, 6, v{vT0}
    v_and_b32 v{vT1}, 3, v{vL}
    v_lshl_add_u32 v{vT0}, v{vT1}, 4, v{vT0}
    s_lshl_b32 s{sT0}, s{sCG}, 8
    v_add_u32 v{vD}, s{sT0}, v{vT0}
    s_lshl_b32 s{sM0B}, s{sWv}, 12
    v_lshrrev_b32 v{vT0}, 5, v{vL}
    v_lshlrev_b32 v{vT0}, 12, v{vT0}
    v_bfe_u32 v{vT1}, v{vL}, 2, 2
    v_lshl_add_u32 v{vT0}, v{vT1}, 6, v{vT0}
    v_bfe_u32 v{vT1}, v{vL}, 4, 1
    v_lshl_add_u32 v{vT0}, v{vT1}, 5, v{vT0}
    v_and_b32 v{vT1}, 3, v{vL}
    v_lshl_add_u32 v{vT0}, v{vT1}, 3, v{vT0}
    """)
    for i in range(4):
        a(f"""
        s_add_u32 s{sT0}, s{sTB}, {i}
        s_and_b32 s{sT1}, s{sT0}, 1
        s_bfe_u32 s{sT2}, s{sT0}, 0x10001
        s_lshl_b32 s{sT2}, s{sT2}, 2
        s_add_u32 s{sT1}, s{sT1}, s{sT2}
        s_lshl_b32 s{sT2}, s{sCH}, 1
        s_add_u32 s{sT1}, s{sT1}, s{sT2}
        s_lshl_b32 s{sT1}, s{sT1}, 8
        s_lshl_b32 s{sT2}, s{sCH}, 13
        s_add_u32 s{sT3}, s{sT1}, s{sT2}
        v_add_u32 v{vAe+i}, s{sT3}, v{vT0}
        s_sub_u32 s{sT3}, s{sT1}, s{sT2}
        s_add_u32 s{sT3}, s{sT3}, 8192
        v_add_u32 v{vAo+i}, s{sT3}, v{vT0}
        """)
    mainloop(False, "gu")
    stats_exchange()
    for i in range(4):
        ext(vCS + i, vAcc + 16 * i, vAx + 4 * (i & 1))
    a(f"v_mul_f32 v{vR}, v{vR}, v{vR}")
    a(f"v_lshlrev_b32 v{vT3}, 4, v{vL}")
    for i in range(2):
        a(f"""
        s_add_u32 s{sT0}, s{sTB}, {i}
        s_and_b32 s{sT0}, s{sT0}, 1
        s_lshl_b32 s{sT1}, s{sCH}, 1
        s_add_u32 s{sT0}, s{sT0}, s{sT1}
        s_lshl_b32 s{sT0}, s{sT0}, 11
        s_lshl_b32 s{sT1}, s{sCG}, 13
        s_add_u32 s{sT0}, s{sT0}, s{sT1}
        s_mul_i32 s{sT1}, s{sTBG}, {AF_TB}
        s_add_u32 s{sT0}, s{sT0}, s{sT1}
        s_add_u32 s{sSO+i}, s{sT0}, {AF}
        """)
        g = vAcc + 16 * i; u = vAcc + 16 * (i + 2)
        for j in range(16):
            a(f"v_mul_f32 v{g+j}, v{g+j}, v{vR}")
        for j in range(16):
            a(f"v_mul_f32 v{g+j}, v{g+j}, v{u+j}")
        p = vP + 8 * i
        for j in range(8):
            a(f"v_cvt_pk_bf16_f32 v{p+j}, v{g+2*j}, v{g+2*j+1}")
        a(f"buffer_store_dwordx4 {vr(p,4)}, v{vT3}, s[{sWS}:{sWS+3}], s{sSO+i} offen")
        a(f"buffer_store_dwordx4 {vr(p+4,4)}, v{vT3}, s[{sWS}:{sWS+3}], s{sSO+i} offen offset:1024")
    a("s_endpgm")

    a("K1_qkv:")
    a(f"""
    s_cmp_eq_u32 s{sCG}, 14
    s_cselect_b32 s{sT0}, s{sP+4}, s{sP+6}
    s_cselect_b32 s{sT1}, s{sP+5}, s{sP+7}
    s_mov_b32 s{sT2}, {448*896}
    s_mov_b32 s{sT3}, {16*896}
    s_cmp_eq_u32 s{sWv}, 7
    s_cselect_b32 s{sW0}, s{sT0}, s{sP+2}
    s_cselect_b32 s{sW0+1}, s{sT1}, s{sP+3}
    s_cselect_b32 s{sW0+2}, {448*56}, s{sT2}
    s_cselect_b32 s{sSTR}, 896, s{sT3}
    s_cselect_b64 vcc, -1, 0
    s_lshl_b32 s{sM0B}, s{sWv}, 10
    ; j = w*64 + l ; row = j/28 ; c16 = j%28
    s_lshl_b32 s{sT0}, s{sWv}, 6
    v_add_u32 v{vT0}, s{sT0}, v{vL}
    v_mul_u32_u24 v{vT1}, 2341, v{vT0}
    v_lshrrev_b32 v{vT1}, 16, v{vT1}
    v_mul_u32_u24 v{vT2}, 28, v{vT1}
    v_sub_u32 v{vT0}, v{vT0}, v{vT2}
    v_mul_u32_u24 v{vT1}, 896, v{vT1}
    v_lshl_add_u32 v{vT0}, v{vT0}, 4, v{vT1}
    s_sub_u32 s{sT0}, s{sCG}, 14
    s_mul_i32 s{sT0}, s{sT0}, 448
    v_add_u32 v{vT0}, s{sT0}, v{vT0}
    v_lshlrev_b32 v{vT1}, 4, v{vL}
    v_cndmask_b32 v{vD}, v{vT0}, v{vT1}, vcc
    v_lshrrev_b32 v{vT0}, 5, v{vL}
    v_bfe_u32 v{vT1}, v{vL}, 2, 2
    v_lshl_add_u32 v{vT0}, v{vT0}, 3, v{vT1}
    v_bfe_u32 v{vT1}, v{vL}, 4, 1
    v_and_b32 v{vT2}, 3, v{vL}
    v_lshlrev_b32 v{vT2}, 3, v{vT2}
    v_lshl_add_u32 v{vT1}, v{vT1}, 5, v{vT2}
    v_mul_u32_u24 v{vT2}, 56, v{vT0}
    v_add_u32 v{vT2}, v{vT2}, v{vT1}
    s_lshl_b32 s{sT2}, s{sCH}, 13
    s_add_u32 s{sT3}, s{sT2}, 7168
    v_add_u32 v{vAkv}, s{sT3}, v{vT2}
    v_mul_u32_u24 v{vT0}, 448, v{vT0}
    v_add_u32 v{vT0}, v{vT0}, v{vT1}
    """)
    for i in range(4):
        a(f"""
        s_add_u32 s{sT0}, s{sTB}, {i}
        s_and_b32 s{sT0}, s{sT0}, 3
        s_lshl_b32 s{sT1}, s{sCH}, 2
        s_add_u32 s{sT0}, s{sT0}, s{sT1}
        s_mul_i32 s{sT1}, s{sT0}, 56
        s_add_u32 s{sT3}, s{sT1}, s{sT2}
        v_add_u32 v{vAe+i}, s{sT3}, v{vT0}
        s_sub_u32 s{sT3}, s{sT1}, s{sT2}
        s_add_u32 s{sT3}, s{sT3}, 8192
        v_add_u32 v{vAo+i}, s{sT3}, v{vT0}
        """)
    mainloop(True, "qkv")
    stats_exchange()
    ext(vCSkv, vAcckv, vAx + 4)
    for i in range(4):
        ext(vCS + i, vAcc + 16 * i, vAx + 4 * (i & 1))
    a(f"""
    s_lshl_b32 s{sT0}, s{sWv}, 12
    v_lshl_add_u32 v{vT2}, v{vL}, 2, s{sT0}
    """)
    for j in range(16):
        a(f"v_mul_f32 v{vAcckv+j}, v{vAcckv+j}, v{vR}")
    for j in range(0, 16, 2):
        a(f"ds_write2st64_b32 v{vT2}, v{vAcckv+j}, v{vAcckv+j+1} offset0:{j} offset1:{j+1}")
    a(f"""
    v_mul_f32 v{vR}, {f2h(QSCALE)}, v{vR}
    v_lshlrev_b32 v{vT3}, 4, v{vL}
    v_cmp_gt_u32 vcc, 32, v{vL}
    """)
    for i in range(4):
        a(f"""
        s_add_u32 s{sT0}, s{sTB}, {i}
        s_and_b32 s{sT0}, s{sT0}, 3
        s_lshl_b32 s{sT1}, s{sCH}, 2
        s_add_u32 s{sT0}, s{sT0}, s{sT1}
        s_sub_u32 s{sT1}, s{sCG}, 14
        s_lshl_b32 s{sT1}, s{sT1}, 3
        s_add_u32 s{sT0}, s{sT0}, s{sT1}
        s_lshl_b32 s{sT0}, s{sT0}, 6
        s_add_u32 s{sT0}, s{sT0}, s{sTBG}
        s_lshl_b32 s{sT0}, s{sT0}, 11
        s_add_u32 s{sSO+i}, s{sT0}, {QF}
        """)
        g = vAcc + 16 * i
        for j in range(16):
            a(f"v_mul_f32 v{g+j}, v{g+j}, v{vR}")
        p = vP + 8 * i
        for j in range(8):
            a(f"v_cvt_pk_bf16_f32 v{p+j}, v{g+2*j}, v{g+2*j+1}")
        a(f"v_cndmask_b32 v{p+6}, 0, v{p+6}, vcc")
        a(f"v_cndmask_b32 v{p+7}, 0, v{p+7}, vcc")
        a(f"buffer_store_dwordx4 {vr(p,4)}, v{vT3}, s[{sWS}:{sWS+3}], s{sSO+i} offen")
        a(f"buffer_store_dwordx4 {vr(p+4,4)}, v{vT3}, s[{sWS}:{sWS+3}], s{sSO+i} offen offset:1024")
    a(f"""
    s_waitcnt lgkmcnt(0)
    s_barrier
    s_cmp_eq_u32 s{sCH}, 0
    s_cbranch_scc0 K1_end
    s_lshl_b32 s{sT0}, s{sTBG}, 12
    s_add_u32 s{sSO}, s{sT0}, {KV}
    s_cmp_eq_u32 s{sCG}, 14
    s_cbranch_scc0 K1_v
    """)
    A = vAcc; B = vAcc + 16
    for j in range(0, 16, 2):
        a(f"ds_read2st64_b32 {vr(A+j,2)}, v{vT2} offset0:{64+j} offset1:{64+j+1}")
    a("s_waitcnt lgkmcnt(0)")
    for j in range(16):
        a(f"v_add_f32 v{A+j}, v{A+j}, v{vAcckv+j}")
    for j in range(12, 16):
        a(f"v_cndmask_b32 v{A+j}, 0, v{A+j}, vcc")
    for j in range(8):
        a(f"v_cvt_pk_bf16_f32 v{B+j}, v{A+2*j}, v{A+2*j+1}")
    a(f"buffer_store_dwordx4 {vr(B,4)}, v{vT3}, s[{sWS}:{sWS+3}], s{sSO} offen")
    a(f"buffer_store_dwordx4 {vr(B+4,4)}, v{vT3}, s[{sWS}:{sWS+3}], s{sSO} offen offset:1024")
    a(f"v_mul_f32 v{vT0}, v{A}, v{A}")
    for j in range(1, 16):
        a(f"v_fmac_f32 v{vT0}, v{A+j}, v{A+j}")
    a(f"""
    v_mov_b32 v{vT1}, v{vT0}
    v_permlane32_swap_b32 v{vT0}, v{vT1}
    v_add_f32 v{vT0}, v{vT0}, v{vT1}
    v_max_f32_dpp v{vT0}, v{vT0}, v{vT0} quad_perm:[1,0,3,2] row_mask:0xf bank_mask:0xf
    v_max_f32_dpp v{vT0}, v{vT0}, v{vT0} quad_perm:[2,3,0,1] row_mask:0xf bank_mask:0xf
    v_max_f32_dpp v{vT0}, v{vT0}, v{vT0} row_half_mirror row_mask:0xf bank_mask:0xf
    v_max_f32_dpp v{vT0}, v{vT0}, v{vT0} row_mirror row_mask:0xf bank_mask:0xf
    v_lshrrev_b32 v{vT1}, 2, v{vL}
    s_lshl_b32 s{sT0}, s{sTBG}, 3
    s_add_u32 s{sT0}, s{sT0}, {KN}
    s_mov_b64 exec, 0x10001
    buffer_store_dword v{vT0}, v{vT1}, s[{sWS}:{sWS+3}], s{sT0} offen
    s_endpgm
    """)
    a("K1_v:")
    a(f"""
    v_and_b32 v{vT0}, 3, v{vL}
    v_bfe_u32 v{vT1}, v{vL}, 3, 2
    v_lshl_add_u32 v{vT0}, v{vT1}, 2, v{vT0}
    v_lshlrev_b32 v{vT0}, 8, v{vT0}
    v_bfe_u32 v{vT1}, v{vL}, 2, 1
    v_lshl_add_u32 v{vT0}, v{vT1}, 7, v{vT0}
    v_lshrrev_b32 v{vT1}, 5, v{vL}
    v_lshl_add_u32 v{vT0}, v{vT1}, 4, v{vT0}
    s_lshl_b32 s{sT0}, s{sWv}, 12
    v_add_u32 v{vT0}, s{sT0}, v{vT0}
    """)
    for g in range(4):
        a(f"ds_read_b128 {vr(A+4*g,4)}, v{vT0} offset:{32*g}")
        a(f"ds_read_b128 {vr(B+4*g,4)}, v{vT0} offset:{16384+32*g}")
    a(f"""
    v_and_b32 v{vT1}, 31, v{vL}
    v_cmp_eq_u32 vcc, 28, v{vT1}
    v_mov_b32 v{vT0}, 0x3f803f80
    v_cndmask_b32 v{vT2}, 0, v{vT0}, vcc
    v_cmp_gt_u32 vcc, 28, v{vT1}
    s_waitcnt lgkmcnt(0)
    """)
    for j in range(16):
        a(f"v_add_f32 v{A+j}, v{A+j}, v{B+j}")
    for j in range(8):
        a(f"v_cvt_pk_bf16_f32 v{B+j}, v{A+2*j}, v{A+2*j+1}")
    for j in range(8):
        a(f"v_cndmask_b32 v{B+j}, v{vT2}, v{B+j}, vcc")
    a(f"buffer_store_dwordx4 {vr(B,4)}, v{vT3}, s[{sWS}:{sWS+3}], s{sSO} offen offset:2048")
    a(f"buffer_store_dwordx4 {vr(B+4,4)}, v{vT3}, s[{sWS}:{sWS+3}], s{sSO} offen offset:3072")
    a("K1_end:\ns_endpgm")
    return a, nv, SCR + 4096 + 2048
```

```python
from asmlib import *
from common import *

def gen_k2():
    a = Asm()
    V = Alloc(1, 128)
    sWS = 4
    sWv, sQB, sKH, sTBG, sHEAD = 8, 9, 10, 11, 12
    sT0, sT1, sT2, sT3 = 13, 14, 15, 16
    sST, sM0, sSO = 17, 18, 19
    sP = 20
    vL = V("lane"); vT0 = V("t0"); vT1 = V("t1"); vL16 = V("l16"); vA = V("addr"); vAn = V("addrn")
    vKN = V("kn", 2)
    vQ = V("q", 8, 4); vNM = V("nm", 16, 4); vS = V("s", 32, 4); vP = V("p", 8, 4); vO = V("o", 16, 4)
    vK = V("k", 8, 4); vV = V("v", 8, 4)
    nv = V.n
    a(f"""
    s_cmp_ge_u32 s2, 256
    s_cbranch_scc1 K2_end
    s_load_dwordx2 s[{sP}:{sP+1}], s[0:1], 88
    v_lshrrev_b32 v{vT0}, 6, v0
    v_and_b32 v{vL}, 63, v0
    v_readfirstlane_b32 s{sWv}, v{vT0}
    v_lshlrev_b32 v{vL16}, 4, v{vL}
    s_and_b32 s{sT0}, s2, 7
    s_lshr_b32 s{sT1}, s2, 3
    s_lshr_b32 s{sT2}, s{sT1}, 3
    s_lshl_b32 s{sT0}, s{sT0}, 2
    s_add_u32 s{sT0}, s{sT0}, s{sT2}          ; rg64
    s_and_b32 s{sT1}, s{sT1}, 7
    s_and_b32 s{sQB}, s{sWv}, 3
    s_lshr_b32 s{sKH}, s{sWv}, 2
    s_lshr_b32 s{sT2}, s{sQB}, 1
    s_lshl_b32 s{sTBG}, s{sT0}, 1
    s_add_u32 s{sTBG}, s{sTBG}, s{sT2}
    s_and_b32 s{sT2}, s{sQB}, 1
    s_lshl_b32 s{sHEAD}, s{sT1}, 1
    s_add_u32 s{sHEAD}, s{sHEAD}, s{sT2}
    s_lshl_b32 s{sM0}, s{sWv}, 12
    s_lshl_b32 s{sT0}, s{sKH}, 17
    s_lshl_b32 s{sT1}, s{sQB}, 12
    s_add_u32 s{sSO}, s{sT0}, s{sT1}
    s_add_u32 s{sSO}, s{sSO}, {KV}
    s_lshl_b32 s{sT0}, s{sKH}, 14
    v_add_u32 v{vA}, s{sT0}, v{vL16}
    s_lshl_b32 s{sT0}, s{sHEAD}, 6
    s_add_u32 s{sT0}, s{sT0}, s{sTBG}
    s_lshl_b32 s{sT0}, s{sT0}, 11
    s_add_u32 s{sT0}, s{sT0}, {QF}
    s_mov_b32 s{sT1}, {KN}
    v_lshlrev_b32 v{vT0}, 3, v{vL}
    s_waitcnt lgkmcnt(0)
    s_mov_b32 s{sWS}, s{sP}
    s_mov_b32 s{sWS+1}, s{sP+1}
    s_mov_b32 s{sWS+2}, {WS_SIZE}
    s_mov_b32 s{sWS+3}, 0x20000
    buffer_load_dwordx4 {vr(vQ,4)}, v{vL16}, s[{sWS}:{sWS+3}], s{sT0} offen
    buffer_load_dwordx4 {vr(vQ+4,4)}, v{vL16}, s[{sWS}:{sWS+3}], s{sT0} offen offset:1024
    buffer_load_dwordx2 {vr(vKN,2)}, v{vT0}, s[{sWS}:{sWS+3}], s{sT1} offen
    """)
    def dma():
        a(f"s_mov_b32 m0, s{sM0}")
        for j in range(4):
            a(f"buffer_load_dwordx4 v{vL16}, s[{sWS}:{sWS+3}], s{sSO} offen offset:{1024*j} lds")
        a(f"""
        s_add_u32 s{sSO}, s{sSO}, 16384
        s_add_u32 s{sM0}, s{sM0}, 32768
        s_and_b32 s{sM0}, s{sM0}, 0x1ffff
        """)
    for st in range(3): dma()
    for j in range(16):
        a(f"v_mov_b32 v{vNM+j}, 0")
        a(f"v_mov_b32 v{vO+j}, 0")
    a(f"""
    s_waitcnt vmcnt(12)
    v_max_f32 v{vKN}, v{vKN}, v{vKN+1}
    v_mov_b32 v{vT0}, 0
    v_max_f32_dpp v{vKN}, v{vKN}, v{vKN} quad_perm:[1,0,3,2] row_mask:0xf bank_mask:0xf
    v_max_f32_dpp v{vKN}, v{vKN}, v{vKN} quad_perm:[2,3,0,1] row_mask:0xf bank_mask:0xf
    v_max_f32_dpp v{vKN}, v{vKN}, v{vKN} row_half_mirror row_mask:0xf bank_mask:0xf
    v_max_f32_dpp v{vKN}, v{vKN}, v{vKN} row_mirror row_mask:0xf bank_mask:0xf
    """)
    for j in range(8):
        a(f"v_dot2c_f32_bf16 v{vT0}, v{vQ+j}, v{vQ+j}")
    a(f"""
    v_readlane_b32 s{sT0}, v{vKN}, 0
    v_readlane_b32 s{sT1}, v{vKN}, 16
    v_readlane_b32 s{sT2}, v{vKN}, 32
    v_readlane_b32 s{sT3}, v{vKN}, 48
    v_mov_b32 v{vT1}, v{vT0}
    s_max_u32 s{sT0}, s{sT0}, s{sT1}
    s_max_u32 s{sT2}, s{sT2}, s{sT3}
    s_max_u32 s{sT0}, s{sT0}, s{sT2}
    v_permlane32_swap_b32 v{vT0}, v{vT1}
    v_add_f32 v{vT0}, v{vT0}, v{vT1}
    v_mul_f32 v{vT0}, s{sT0}, v{vT0}
    v_cmp_nge_f32 vcc, {f2h(BOUND2)}, v{vT0}
    s_cbranch_vccz K2_fast
    """)
    a(f"""
    s_mov_b32 s{sT0}, {KV}
    v_mov_b32 v{vT0}, 0xff800000
    K2_maxloop:
    buffer_load_dwordx4 {vr(vK,4)}, v{vL16}, s[{sWS}:{sWS+3}], s{sT0} offen
    buffer_load_dwordx4 {vr(vK+4,4)}, v{vL16}, s[{sWS}:{sWS+3}], s{sT0} offen offset:1024
    s_waitcnt vmcnt(0)
    v_mfma_f32_32x32x16_bf16 {vr(vS,16)}, {vr(vK,4)}, {vr(vQ,4)}, 0
    v_mfma_f32_32x32x16_bf16 {vr(vS,16)}, {vr(vK+4,4)}, {vr(vQ+4,4)}, {vr(vS,16)}
    s_add_u32 s{sT0}, s{sT0}, 4096
    """)
    for j in range(0, 16, 2):
        a(f"v_max3_f32 v{vT0}, v{vS+j}, v{vS+j+1}, v{vT0}")
    a(f"""
    s_cmp_lt_u32 s{sT0}, {KV + 64*4096}
    s_cbranch_scc1 K2_maxloop
    v_mov_b32 v{vT1}, v{vT0}
    v_permlane32_swap_b32 v{vT0}, v{vT1}
    v_max_f32 v{vT0}, v{vT0}, v{vT1}
    """)
    for j in range(16):
        a(f"v_sub_f32 v{vNM+j}, 0, v{vT0}")
    a("K2_fast:")
    def smfma(buf):
        s = vr(vS + 16 * buf, 16)
        a(f"v_mfma_f32_32x32x16_bf16 {s}, {vr(vK,4)}, {vr(vQ,4)}, {vr(vNM,16)}")
        a(f"v_mfma_f32_32x32x16_bf16 {s}, {vr(vK+4,4)}, {vr(vQ+4,4)}, {s}")
    a(f"""
    s_waitcnt vmcnt(8)
    s_barrier
    ds_read_b128 {vr(vK,4)}, v{vA}
    ds_read_b128 {vr(vK+4,4)}, v{vA} offset:1024
    s_mov_b32 s{sST}, 0
    s_waitcnt lgkmcnt(0)
    """)
    smfma(0)
    a("s_nop 7\n.p2align 6\nK2_loop:")
    for t in range(4):
        cur = vS + 16 * (t & 1)
        if t == 3:
            a(f"""
            v_add_u32 v{vAn}, 0x8000, v{vA}
            v_and_b32 v{vAn}, 0x1ffff, v{vAn}
            s_cmp_lt_u32 s{sST}, 6
            s_cbranch_scc1 K2_w4
            s_waitcnt vmcnt(0)
            K2_w4:
            s_waitcnt vmcnt(4)
            s_barrier
            ds_read_b128 {vr(vK,4)}, v{vAn}
            ds_read_b128 {vr(vK+4,4)}, v{vAn} offset:1024
            """)
        else:
            a(f"ds_read_b128 {vr(vK,4)}, v{vA} offset:{4096*(t+1)}")
            a(f"ds_read_b128 {vr(vK+4,4)}, v{vA} offset:{4096*(t+1)+1024}")
        a(f"ds_read_b128 {vr(vV,4)}, v{vA} offset:{4096*t+2048}")
        a(f"ds_read_b128 {vr(vV+4,4)}, v{vA} offset:{4096*t+3072}")
        if t == 3:
            a(f"""
            s_cmp_lt_u32 s{sST}, 5
            s_cbranch_scc0 K2_nodma
            """)
            dma()
            a("K2_nodma:")
        for j in range(8):
            a(f"v_exp_f32 v{cur+j}, v{cur+j}")
        for j in range(4):
            a(f"v_cvt_pk_bf16_f32 v{vP+j}, v{cur+2*j}, v{cur+2*j+1}")
        a("s_waitcnt lgkmcnt(2)")
        smfma((t + 1) & 1)
        a("s_waitcnt lgkmcnt(1)")
        a(f"v_mfma_f32_32x32x16_bf16 {vr(vO,16)}, {vr(vV,4)}, {vr(vP,4)}, {vr(vO,16)}")
        for j in range(8, 16):
            a(f"v_exp_f32 v{cur+j}, v{cur+j}")
        for j in range(4, 8):
            a(f"v_cvt_pk_bf16_f32 v{vP+j}, v{cur+2*j}, v{cur+2*j+1}")
        a("s_waitcnt lgkmcnt(0)")
        a(f"v_mfma_f32_32x32x16_bf16 {vr(vO,16)}, {vr(vV+4,4)}, {vr(vP+4,4)}, {vr(vO,16)}")
    a(f"""
    v_mov_b32 v{vA}, v{vAn}
    s_add_u32 s{sST}, s{sST}, 1
    s_cmp_lt_u32 s{sST}, 8
    s_cbranch_scc1 K2_loop
    """)
    a(f"""
    s_lshl_b32 s{sT0}, s{sQB}, 12
    s_add_u32 s{sT0}, s{sT0}, 32768
    v_add_u32 v{vT0}, s{sT0}, v{vL16}
    s_cmp_eq_u32 s{sKH}, 0
    s_cbranch_scc1 K2_comb
    """)
    for g in range(4):
        a(f"ds_write_b128 v{vT0}, {vr(vO+4*g,4)} offset:{1024*g}")
    a(f"""
    s_waitcnt lgkmcnt(0)
    s_barrier
    s_endpgm
    K2_comb:
    s_barrier
    """)
    for g in range(4):
        a(f"ds_read_b128 {vr(vS+4*g,4)}, v{vT0} offset:{1024*g}")
    a(f"""
    s_mul_i32 s{sT0}, s{sTBG}, {AF_TB}
    s_lshl_b32 s{sT1}, s{sHEAD}, 11
    s_add_u32 s{sT0}, s{sT0}, s{sT1}
    s_add_u32 s{sT0}, s{sT0}, {AF + 112*1024}
    v_cmp_gt_u32 vcc, 32, v{vL}
    s_waitcnt lgkmcnt(0)
    """)
    for j in range(16):
        a(f"v_add_f32 v{vO+j}, v{vO+j}, v{vS+j}")
    a(f"""
    v_mov_b32 v{vT0}, v{vO+12}
    v_mov_b32 v{vT1}, v{vO+12}
    v_permlane32_swap_b32 v{vT0}, v{vT1}
    v_rcp_f32 v{vT1}, v{vT1}
    """)
    for j in range(16):
        a(f"v_mul_f32 v{vO+j}, v{vO+j}, v{vT1}")
    for j in range(8):
        a(f"v_cvt_pk_bf16_f32 v{vP+j}, v{vO+2*j}, v{vO+2*j+1}")
    a(f"""
    v_cndmask_b32 v{vP+6}, 0, v{vP+6}, vcc
    v_cndmask_b32 v{vP+7}, 0, v{vP+7}, vcc
    buffer_store_dwordx4 {vr(vP,4)}, v{vL16}, s[{sWS}:{sWS+3}], s{sT0} offen
    buffer_store_dwordx4 {vr(vP+4,4)}, v{vL16}, s[{sWS}:{sWS+3}], s{sT0} offen offset:1024
    K2_end:
    s_endpgm
    """)
    return a, nv, 131072
```

```python
from asmlib import *
from common import *

def gen_k3():
    a = Asm()
    V = Alloc(1, 256)
    sWS, sW, sX, sOUT = 4, 8, 12, 16
    sWv, sRG, sCG = 20, 21, 22
    sT0, sT1, sT2, sT3 = 23, 24, 25, 26
    sKS, sM0B, sA0, sA1 = 27, 28, 29, 30
    sMASK = 31
    sP = 32
    sSO = 42
    sC0 = 44
    R = 12
    vL = V("lane"); vT0 = V("t0"); vT1 = V("t1"); vL16 = V("l16"); vD = V("dma"); vA = V("a", 2); vXO = V("xo")
    vXR = V("xr", 8, 4)
    vB = V("b", 8 * R, 4); vF = V("f", 16, 4); vAcc = V("acc", 64, 4)
    nv = V.n
    RED = 4 * R * 2048
    a(f"""
    s_cmp_ge_u32 s2, 224
    s_cbranch_scc1 K3_end
    s_load_dwordx2 s[{sP}:{sP+1}], s[0:1], 0
    s_load_dwordx2 s[{sP+2}:{sP+3}], s[0:1], 32
    s_load_dwordx4 s[{sP+4}:{sP+7}], s[0:1], 64
    s_load_dwordx2 s[{sP+8}:{sP+9}], s[0:1], 88
    v_lshrrev_b32 v{vT0}, 6, v0
    v_and_b32 v{vL}, 63, v0
    v_readfirstlane_b32 s{sWv}, v{vT0}
    v_lshlrev_b32 v{vL16}, 4, v{vL}
    s_mov_b32 s{sMASK}, 0xffff0000
    s_mov_b32 s{sC0}, {448*896}
    ; xcd = wg&7, idx = wg>>3 (0..27): rg = xcd*4 + idx/7, cg = idx%7
    s_and_b32 s{sT0}, s2, 7
    s_lshr_b32 s{sT1}, s2, 3
    s_mul_i32 s{sT2}, s{sT1}, 37
    s_lshr_b32 s{sT2}, s{sT2}, 8
    s_mul_i32 s{sT3}, s{sT2}, 7
    s_sub_u32 s{sCG}, s{sT1}, s{sT3}
    s_lshl_b32 s{sT0}, s{sT0}, 2
    s_add_u32 s{sRG}, s{sT0}, s{sT2}
    s_mul_i32 s{sKS}, s{sWv}, 36
    s_mul_i32 s{sM0B}, s{sWv}, {R*2048}
    s_lshr_b32 s{sT0}, s{sWv}, 1
    s_lshl_b32 s{sT1}, s{sRG}, 1
    s_add_u32 s{sT2}, s{sT1}, s{sT0}
    s_xor_b32 s{sT3}, s{sT2}, 1
    s_mul_i32 s{sA0}, s{sT2}, {AF_TB}
    s_mul_i32 s{sA1}, s{sT3}, {AF_TB}
    s_lshl_b32 s{sT0}, s{sKS}, 10
    s_add_u32 s{sT0}, s{sT0}, {AF}
    s_add_u32 s{sA0}, s{sA0}, s{sT0}
    s_add_u32 s{sA1}, s{sA1}, s{sT0}
    v_and_b32 v{vT0}, 31, v{vL}
    s_lshl_b32 s{sT2}, s{sT2}, 5
    v_add_u32 v{vT0}, s{sT2}, v{vT0}
    v_mul_u32_u24 v{vT0}, 896, v{vT0}
    v_lshrrev_b32 v{vT1}, 5, v{vL}
    v_lshl_add_u32 v{vT0}, v{vT1}, 5, v{vT0}
    s_and_b32 s{sT0}, s{sWv}, 1
    s_lshl_b32 s{sT0}, s{sT0}, 6
    s_lshl_b32 s{sT1}, s{sCG}, 7
    s_add_u32 s{sT0}, s{sT0}, s{sT1}
    v_add_u32 v{vXO}, s{sT0}, v{vT0}
    v_lshrrev_b32 v{vT0}, 5, v{vL}
    v_bfe_u32 v{vT1}, v{vL}, 2, 2
    v_lshl_add_u32 v{vT0}, v{vT0}, 2, v{vT1}
    v_mul_u32_u24 v{vT0}, 896, v{vT0}
    v_bfe_u32 v{vT1}, v{vL}, 4, 1
    v_lshl_add_u32 v{vT0}, v{vT1}, 6, v{vT0}
    v_and_b32 v{vT1}, 3, v{vL}
    v_lshl_add_u32 v{vT0}, v{vT1}, 4, v{vT0}
    v_add_u32 v{vD}, s{sT1}, v{vT0}
    v_lshrrev_b32 v{vT0}, 5, v{vL}
    v_lshlrev_b32 v{vT0}, 9, v{vT0}
    v_bfe_u32 v{vT1}, v{vL}, 2, 2
    v_lshl_add_u32 v{vT0}, v{vT1}, 6, v{vT0}
    v_and_b32 v{vT1}, 1, v{vL}
    v_lshl_add_u32 v{vT0}, v{vT1}, 5, v{vT0}
    v_bfe_u32 v{vT1}, v{vL}, 4, 1
    v_lshl_add_u32 v{vT0}, v{vT1}, 4, v{vT0}
    v_bfe_u32 v{vT1}, v{vL}, 1, 1
    v_lshl_add_u32 v{vT0}, v{vT1}, 3, v{vT0}
    s_and_b32 s{sT0}, s{sWv}, 1
    s_lshl_b32 s{sT0}, s{sT0}, 8
    s_add_u32 s{sT1}, s{sT0}, s{sM0B}
    v_add_u32 v{vA}, s{sT1}, v{vT0}
    v_xor_b32 v{vA+1}, 0x100, v{vA}
    s_waitcnt lgkmcnt(0)
    s_mov_b32 s{sX}, s{sP}
    s_mov_b32 s{sX+1}, s{sP+1}
    s_mov_b32 s{sX+2}, {2048*896}
    s_mov_b32 s{sX+3}, 0x20000
    s_mov_b32 s{sOUT}, s{sP+6}
    s_mov_b32 s{sOUT+1}, s{sP+7}
    s_mov_b32 s{sOUT+2}, {2048*896}
    s_mov_b32 s{sOUT+3}, 0x20000
    s_mov_b32 s{sWS}, s{sP+8}
    s_mov_b32 s{sWS+1}, s{sP+9}
    s_mov_b32 s{sWS+2}, {WS_SIZE}
    s_mov_b32 s{sWS+3}, 0x20000
    s_mov_b32 s{sW+3}, 0x20000
    buffer_load_dwordx4 {vr(vXR,4)}, v{vXO}, s[{sX}:{sX+3}], 0 offen
    buffer_load_dwordx4 {vr(vXR+4,4)}, v{vXO}, s[{sX}:{sX+3}], 0 offen offset:16
    """)
    def loads(j):
        slot = j % R
        a(f"""
        s_add_u32 s{sT0}, s{sKS}, {j}
        s_sub_u32 s{sT1}, s{sT0}, 112
        s_lshr_b32 s{sT2}, s{sT1}, 1
        s_mul_i32 s{sT2}, s{sT2}, 28
        s_and_b32 s{sT1}, s{sT1}, 1
        s_lshl_b32 s{sT1}, s{sT1}, 4
        s_add_u32 s{sT1}, s{sT1}, s{sT2}
        s_lshl_b32 s{sT2}, s{sT0}, 4
        s_cmp_lt_u32 s{sT0}, 112
        s_cselect_b32 s{sT1}, s{sT2}, s{sT1}
        s_cselect_b32 s{sW}, s{sP+4}, s{sP+2}
        s_cselect_b32 s{sW+1}, s{sP+5}, s{sP+3}
        s_cselect_b32 s{sW+2}, {1792*896}, s{sC0}
        s_mul_i32 s{sSO}, s{sT1}, 896
        s_add_u32 s{sSO+1}, s{sSO}, {8*896}
        s_add_u32 m0, s{sM0B}, {slot*2048}
        s_add_u32 s{sT0}, s{sA0}, {j*1024}
        buffer_load_dwordx4 v{vD}, s[{sW}:{sW+3}], s{sSO} offen lds
        s_add_u32 m0, s{sM0B}, {slot*2048+1024}
        s_add_u32 s{sT1}, s{sA1}, {j*1024}
        buffer_load_dwordx4 v{vD}, s[{sW}:{sW+3}], s{sSO+1} offen lds
        buffer_load_dwordx4 {vr(vB+8*slot,4)}, v{vL16}, s[{sWS}:{sWS+3}], s{sT0} offen
        buffer_load_dwordx4 {vr(vB+8*slot+4,4)}, v{vL16}, s[{sWS}:{sWS+3}], s{sT1} offen
        """)
    def reads(j):
        slot = j % R
        for c in range(2):
            f = vF + 8 * (j & 1) + 4 * c
            a(f"ds_read_b64_tr_b16 {vr(f,2)}, v{vA+c} offset:{slot*2048}")
            a(f"ds_read_b64_tr_b16 {vr(f+2,2)}, v{vA+c} offset:{slot*2048+1024}")
    N = 36
    for j in range(R): loads(j)
    a(f"s_waitcnt vmcnt({4*(R-1)})")
    reads(0)
    for j in range(N):
        issued = min(N, j + R)
        if j + 1 < N:
            a(f"s_waitcnt vmcnt({4*(issued - (j+2))})")
            reads(j + 1)
            a("s_waitcnt lgkmcnt(4)")
        else:
            a("s_waitcnt lgkmcnt(0)")
        slot = j % R
        for i in range(4):
            b = i >> 1; c = i & 1
            acc = vr(vAcc + 16 * i, 16)
            a(f"v_mfma_f32_32x32x16_bf16 {acc}, {vr(vF+8*(j&1)+4*c,4)}, {vr(vB+8*slot+4*b,4)}, {acc if j else 0}")
        if j + R < N: loads(j + R)
    for i in range(1, 4):
        a(f"""
        s_xor_b32 s{sT0}, s{sWv}, {i}
        s_mul_i32 s{sT0}, s{sT0}, 12288
        s_add_u32 s{sT0}, s{sT0}, {RED + (i-1)*4096}
        v_add_u32 v{vT0}, s{sT0}, v{vL16}
        """)
        for g in range(4):
            a(f"ds_write_b128 v{vT0}, {vr(vAcc+16*i+4*g,4)} offset:{1024*g}")
    a(f"""
    s_mul_i32 s{sT0}, s{sWv}, 12288
    s_add_u32 s{sT0}, s{sT0}, {RED}
    v_add_u32 v{vT0}, s{sT0}, v{vL16}
    s_waitcnt lgkmcnt(0)
    s_barrier
    """)
    for g in range(12):
        a(f"ds_read_b128 {vr(vAcc+16+4*g,4)}, v{vT0} offset:{1024*g}")
    for j in range(8):
        a(f"v_lshlrev_b32 v{vT0}, 16, v{vXR+j}")
        a(f"v_and_b32 v{vT1}, s{sMASK}, v{vXR+j}")
        a(f"v_add_f32 v{vAcc+2*j}, v{vAcc+2*j}, v{vT0}")
        a(f"v_add_f32 v{vAcc+2*j+1}, v{vAcc+2*j+1}, v{vT1}")
    a("s_waitcnt lgkmcnt(0)")
    for i in range(1, 4):
        for j in range(16):
            a(f"v_add_f32 v{vAcc+j}, v{vAcc+j}, v{vAcc+16*i+j}")
    for j in range(8):
        a(f"v_cvt_pk_bf16_f32 v{vXR+j}, v{vAcc+2*j}, v{vAcc+2*j+1}")
    a(f"""
    buffer_store_dwordx4 {vr(vXR,4)}, v{vXO}, s[{sOUT}:{sOUT+3}], 0 offen
    buffer_store_dwordx4 {vr(vXR+4,4)}, v{vXO}, s[{sOUT}:{sOUT+3}], 0 offen offset:16
    K3_end:
    s_endpgm
    """)
    return a, nv, RED + 4 * 12288
```

```python
import sys
sys.path.insert(0, "gen")
from asmlib import *
from k1 import gen_k1
from k2 import gen_k2
from k3 import gen_k3
NAME = "parallel_sum__grouped_kv_mqa__glu_gated_bilinear__prompt"
def build(out, extra_empty=0):
    ks = [("k1_kernel", gen_k1(), 256, 512), ("k2_kernel", gen_k2(), 256, 512), ("k3_kernel", gen_k3(), 224, 256)]
    ref = open(f"cdna_kernels/{NAME}.s.ref").read().split("\n")
    head = [l for l in ref if l.startswith(";") and "@launch" not in l and "Override" not in l and "grid=ceil" not in l]
    launches = []; texts = []; descs = []
    for name, (a, nv, lds), grid, block in ks:
        t, d = kernel_text(name, a, nv, verbose="-v" in sys.argv)
        launches.append(f"; @launch kernel={name} grid=({grid},1,1) block=({block},1,1) lds={lds}")
        texts.append(t); descs.append(d)
        print(name, "vgprs", nv, "lds", lds, "lines", len(t.split("\n")))
    if extra_empty:
        e = Asm(); e("s_endpgm")
        t, d = kernel_text("empty_kernel", e, 8)
        texts.append(t); descs.append(d)
        for i in range(extra_empty):
            launches.append("; @launch kernel=empty_kernel grid=(256,1,1) block=(256,1,1) lds=0")
    s = "\n".join(head + launches) + '\n.amdgcn_target "amdgcn-amd-amdhsa--gfx950"\n' + "".join(texts)
    s += '.section .rodata,"a"\n' + "".join(".p2align 6\n" + d for d in descs)
    open(out, "w").write(s)
if __name__ == "__main__":
    build(f"cdna_kernels/{NAME}.s")
    build("v_empty2.s", 2)
```
